```python
import torch

def _softmax(x, axis=-1):
    return torch.softmax(x, dim=axis)
def _gelu(x):
    return torch.nn.functional.gelu(x, approximate="tanh")
def _silu(x):
    return torch.nn.functional.silu(x)
def _sigmoid(x):
    return torch.sigmoid(x)
def _layernorm(x, axis=-1, eps=1e-5):
    m = x.mean(dim=axis, keepdim=True)
    v = x.var(dim=axis, keepdim=True, unbiased=False)
    return (x - m) / torch.sqrt(v + eps)
def _scatter_add(tgt, idx, src, axis=0):
    return tgt.clone().index_add_(axis, idx, src)
def _segment_sum(src, seg, n):
    out = torch.zeros((n,) + src.shape[1:], dtype=src.dtype)
    return out.index_add_(0, seg, src)
def _pad(x, pw):
    flat = tuple(v for pair in reversed(pw) for v in pair)
    return torch.nn.functional.pad(x, flat)

kernel_name = 'sequential_preLN__linear_attn_block__glu_gated_bilinear__prompt'

def setup_inputs():

    _w = (lambda a: (lambda t: t.to(torch.bfloat16) if t.is_floating_point() else t)(torch.as_tensor(a)))
    def _A_setup():
        B, S, D = 1, 2048, 448
        return {
            "x": _w((lambda *s: torch.randn(*s, dtype=torch.bfloat16) * 0.05)(B, S, D)),
            "wqkv": _w((lambda *s: torch.randn(*s, dtype=torch.bfloat16) * 0.1)(D, 3 * D)),
            "wo": _w((lambda *s: torch.randn(*s, dtype=torch.bfloat16) * 0.05)(D, D)),
        }
    _A_in = _A_setup()

    def _B_setup():
        B, S, D, F = 1, 2048, 448, 1792
        return {
            "x": _w((lambda *s: torch.randn(*s, dtype=torch.bfloat16) * 0.05)(B, S, D)),
            "w_gate": _w((lambda *s: torch.randn(*s, dtype=torch.bfloat16) * 0.4)(D, F) * (D ** -0.5)),
            "w_up": _w((lambda *s: torch.randn(*s, dtype=torch.bfloat16) * 0.4)(D, F) * (D ** -0.5)),
            "w_down": _w((lambda *s: torch.randn(*s, dtype=torch.bfloat16) * 0.4)(F, D) * (F ** -0.5)),
        }
    _B_in = _B_setup()

    return {
        "A_x": _A_in["x"],
        "A_wqkv": _A_in["wqkv"],
        "A_wo": _A_in["wo"],
        "B_x": _B_in["x"],
        "B_w_gate": _B_in["w_gate"],
        "B_w_up": _B_in["w_up"],
        "B_w_down": _B_in["w_down"],
    }

def reference(A_x, A_wqkv, A_wo, B_x, B_w_gate, B_w_up, B_w_down):
    def _A_ref(x, wqkv, wo):
        B, S, D = x.shape
        H = 16; Dh = D // H
        qkv = (lambda x, *d: x.permute(*d))((x @ wqkv).reshape(B, S, 3, H, Dh), 2, 0, 3, 1, 4)
        q, k, v = qkv[0], qkv[1], qkv[2]
        phi = lambda t: torch.where(t > 0, t + 1, torch.exp(t)) + 1e-6
        pq, pk = phi(q), phi(k)
        kv = torch.einsum("bhsd,bhse->bhde", pk, v)
        z = torch.einsum("bhsd->bhd", pk)
        num = torch.einsum("bhqd,bhde->bhqe", pq, kv)
        den = torch.einsum("bhqd,bhd->bhq", pq, z)[..., None] + 1e-6
        o = num / den
        return (lambda x, *d: x.permute(*d))(o, 0, 2, 1, 3).reshape(B, S, D) @ wo

    def _B_ref(x, w_gate, w_up, w_down):
        g = torch.einsum("bsd,df->bsf", x, w_gate)
        u = torch.einsum("bsd,df->bsf", x, w_up)
        h = g * u
        return torch.einsum("bsf,fd->bsd", h, w_down)

    x = A_x
    h = x + _A_ref(_layernorm(x, axis=-1), A_wqkv, A_wo)
    h2 = h + _B_ref(_layernorm(h, axis=-1), B_w_gate, B_w_up, B_w_down)
    return h2
```

```python
class Em:
    def __init__(self):
        self.L = []
        self.vmq = []; self.vmdone = -1
        self.uid = 0
    def e(self, s):
        self.L.append("    " + s)
    def c(self, s):
        self.L.append("    ; " + s)
    def lab(self, s):
        self.L.append(s + ":")
    def raw(self, s):
        self.L.append(s)
    def newlab(self, p):
        self.uid += 1
        return f".L{p}_{self.uid}"
    def vm(self, s, tag):
        self.e(s); self.vmq.append(tag)
    def vm_reset(self):
        self.vmq = []; self.vmdone = -1
    def wait_vm(self, tag, extra=""):
        idx = max(i for i, t in enumerate(self.vmq) if t == tag)
        if idx <= self.vmdone:
            if extra: self.e(f"s_waitcnt{extra}")
            return
        n = len(self.vmq) - 1 - idx
        assert n <= 63, (tag, n)
        self.vmdone = idx
        self.e(f"s_waitcnt vmcnt({n}){extra}")
    def nop(self, n):
        while n > 0:
            k = min(n, 8)
            self.e(f"s_nop {k-1}")
            n -= k
    def text(self):
        return "\n".join(self.L) + "\n"

def v(i, n=1):
    return f"v{i}" if n == 1 else f"v[{i}:{i+n-1}]"
def a(i, n=1):
    return f"a{i}" if n == 1 else f"a[{i}:{i+n-1}]"
def s(i, n=1):
    return f"s{i}" if n == 1 else f"s[{i}:{i+n-1}]"

class Alloc:
    def __init__(self, start, limit):
        self.p = start; self.limit = limit
    def __call__(self, n=1, al=1):
        if n >= 2 and al == 1: al = 2
        self.p = (self.p + al - 1) // al * al
        r = self.p; self.p += n
        assert self.p <= self.limit, "register overflow"
        return r

import struct
def f2u(x):
    return struct.unpack("<I", struct.pack("<f", x))[0]
def hx(x):
    return f"0x{x & 0xffffffff:08x}"
```

```python
import sys
from asmlib import *

NAME = "sequential_preLN__linear_attn_block__glu_gated_bilinear__prompt"
PQ_OFF, PART_OFF, MF_OFF, ZC_OFF, CS_OFF = 0x0, 0x200000, 0x300000, 0x380000, 0x381000
ST_OFF, HF_OFF, HH_OFF, WS_SIZE = 0x390000, 0x400000, 0x600000, 0x1000000
X_BYTES, WQKV_BYTES, WO_BYTES, WG_BYTES = 2048*896, 448*2688, 448*896, 448*3584
LOG2E = 1.4426950408889634
ONES = 0x3F803F80
MFMA = "v_mfma_f32_16x16x32_bf16"

def srd(E, base, size):
    E.e(f"s_mov_b32 {s(base+2)}, {hx(size)}")
    E.e(f"s_mov_b32 {s(base+3)}, 0x00020000")

def header(E, lab):
    E.raw(f".globl {lab}")
    E.raw(".p2align 8")
    E.raw(f".type {lab},@function")
    E.lab(lab)

def gen_k1(E):
    lab = "k1_kernel"
    header(E, lab)
    E.vm_reset()
    SX, SW, SO, SWS, SD, SG, SU, SJ = 8, 12, 16, 20, 24, 28, 32, 36
    sW, sRT, sH, sT0, sT1, sX0, sX1, sBlk, sM0 = 40, 41, 42, 43, 44, 45, 46, 47, 48
    sMask12, sMaskGe12, sMaskG3 = 50, 52, 54
    sTk = 56
    LDS_CS, LDS_ST, LDS_TK = 86016, 86528, 87552
    LDS_KVX, LDS_WO, LDS_KVS = 0, 16384, 45056
    end = ".Lk1_end"
    E.e("s_cmp_ge_u32 s2, 256")
    E.e(f"s_cbranch_scc1 {end}")
    E.e(f"s_load_dwordx2 {s(SX,2)}, s[0:1], 0")
    E.e(f"s_load_dwordx2 {s(SW,2)}, s[0:1], 8")
    E.e(f"s_load_dwordx2 {s(SO,2)}, s[0:1], 16")
    E.e(f"s_load_dwordx2 {s(SG,2)}, s[0:1], 32")
    E.e(f"s_load_dwordx2 {s(SU,2)}, s[0:1], 40")
    E.e(f"s_load_dwordx2 {s(SD,2)}, s[0:1], 64")
    E.e(f"s_load_dwordx2 {s(SWS,2)}, s[0:1], 72")
    A = Alloc(1, 256)
    vL, vG, vN, vT0, vT1, vT2 = A(), A(), A(), A(), A(), A()
    vXo = A(); vD = [A(), A(), A()]; vR = [A(), A()]
    vOnes = A(4, 2)
    WF = [A(24, 2), A(24, 2)]
    ACC = A(48, 2)
    SQ = A(8, 2)
    CSA = A(12, 2)
    def acc(rg, t): return ACC + (rg*6 + t)*4
    def xf(k, rg): return a((k*2 + rg)*4, 4)
    E.e(f"v_and_b32 {v(vL)}, 63, v0")
    E.e(f"v_lshrrev_b32 {v(vT0)}, 6, v0")
    E.e(f"v_lshrrev_b32 {v(vG)}, 4, {v(vL)}")
    E.e(f"v_readfirstlane_b32 {s(sW)}, {v(vT0)}")
    E.e(f"v_and_b32 {v(vN)}, 15, {v(vL)}")
    E.e(f"s_bfe_u32 {s(sT0)}, s2, 0x20001")
    E.e(f"s_lshl_b32 {s(sT0)}, {s(sT0)}, 2")
    E.e(f"s_lshr_b32 {s(sRT)}, s2, 6")
    E.e(f"s_add_u32 {s(sRT)}, {s(sRT)}, {s(sT0)}")
    E.e(f"s_and_b32 {s(sT0)}, s2, 1")
    E.e(f"s_lshl_b32 {s(sT0)}, {s(sT0)}, 3")
    E.e(f"s_bfe_u32 {s(sH)}, s2, 0x30003")
    E.e(f"s_add_u32 {s(sH)}, {s(sH)}, {s(sT0)}")
    E.e(f"s_lshl_b32 {s(sT0)}, {s(sRT)}, 2")
    E.e(f"s_add_u32 {s(sT0)}, {s(sT0)}, {s(sW)}")
    E.e(f"s_mul_i32 {s(sX0)}, {s(sT0)}, {32*896}")
    E.e(f"s_add_u32 {s(sX1)}, {s(sX0)}, {16*896}")
    E.e(f"v_mul_u32_u24 {v(vXo)}, 896, {v(vN)}")
    E.e(f"v_lshl_add_u32 {v(vXo)}, {v(vG)}, 4, {v(vXo)}")
    E.e(f"s_mul_i32 {s(sT1)}, {s(sH)}, 56")
    for i in range(3):
        E.e(f"v_add_u32 {v(vT0)}, {64*i}, {v(vL)}")
        E.e(f"v_mul_u32_u24 {v(vT1)}, 171, {v(vT0)}")
        E.e(f"v_lshrrev_b32 {v(vT1)}, 11, {v(vT1)}")
        E.e(f"v_mul_u32_u24 {v(vT2)}, 12, {v(vT1)}")
        E.e(f"v_sub_u32 {v(vT0)}, {v(vT0)}, {v(vT2)}")
        E.e(f"v_mul_u32_u24 {v(vD[i])}, 2688, {v(vT1)}")
        E.e(f"v_lshrrev_b32 {v(vT2)}, 2, {v(vT0)}")
        E.e(f"v_mul_u32_u24 {v(vT2)}, 896, {v(vT2)}")
        E.e(f"v_add_u32 {v(vD[i])}, {v(vD[i])}, {v(vT2)}")
        E.e(f"v_lshrrev_b32 {v(vT1)}, 2, {v(vT1)}")
        E.e(f"v_and_b32 {v(vT1)}, 2, {v(vT1)}")
        E.e(f"v_xor_b32 {v(vT0)}, {v(vT0)}, {v(vT1)}")
        E.e(f"v_and_b32 {v(vT0)}, 3, {v(vT0)}")
        E.e(f"v_lshl_add_u32 {v(vD[i])}, {v(vT0)}, 4, {v(vD[i])}")
        if i:
            E.e(f"v_subrev_u32 {v(vD[i])}, {1024*i}, {v(vD[i])}")
    E.e(f"s_mul_i32 {s(sBlk)}, {s(sW)}, 43008")
    E.e(f"s_add_u32 {s(sBlk)}, {s(sBlk)}, {s(sT1)}")
    E.e(f"s_mul_i32 {s(sM0)}, {s(sW)}, 3072")
    srd(E, SX, X_BYTES); srd(E, SW, WQKV_BYTES)
    E.e("s_waitcnt lgkmcnt(0)")
    for st in range(7):
        E.e(f"s_mov_b32 m0, {s(sM0)}")
        if st < 6:
            E.e(f"s_add_u32 {s(sM0)}, {s(sM0)}, 12288")
        else:
            E.e("s_nop 0")
        for i in range(3):
            E.vm(f"buffer_load_dwordx4 {v(vD[i])}, {s(SW,4)}, {s(sBlk)} offen offset:{1024*i} lds", f"st{st}")
        if st < 6:
            E.e(f"s_add_u32 {s(sBlk)}, {s(sBlk)}, {4*43008}")
        for kk in range(2):
            k = 2*st + kk
            E.vm(f"buffer_load_dwordx4 {xf(k,0)}, {v(vXo)}, {s(SX,4)}, {s(sX0)} offen offset:{64*k}", f"st{st}")
            E.vm(f"buffer_load_dwordx4 {xf(k,1)}, {v(vXo)}, {s(SX,4)}, {s(sX1)} offen offset:{64*k}", f"st{st}")
    srd(E, SO, WO_BYTES); srd(E, SWS, WS_SIZE); srd(E, SD, 256); srd(E, SJ, WG_BYTES)
    E.e(f"v_lshlrev_b32 {v(vT0)}, 2, v0")
    E.e(f"v_and_b32 {v(vT0)}, 511, {v(vT0)}")
    E.e(f"v_add_u32 {v(vT0)}, {LDS_CS}, {v(vT0)}")
    E.e(f"v_mov_b32 {v(vT1)}, 0")
    E.e(f"ds_write_b32 {v(vT0)}, {v(vT1)}")
    E.e(f"v_lshrrev_b32 {v(vT0)}, 2, {v(vN)}")
    E.e(f"v_lshl_add_u32 {v(vT0)}, {v(vG)}, 3, {v(vT0)}")
    E.e(f"v_mul_u32_u24 {v(vT0)}, 192, {v(vT0)}")
    E.e(f"v_and_b32 {v(vT1)}, 3, {v(vL)}")
    E.e(f"v_lshl_add_u32 {v(vT0)}, {v(vT1)}, 3, {v(vT0)}")
    E.e(f"v_and_b32 {v(vT1)}, 1, {v(vG)}")
    E.e(f"v_lshl_add_u32 {v(vR[0])}, {v(vT1)}, 5, {v(vT0)}")
    E.e(f"v_xor_b32 {v(vT1)}, 1, {v(vT1)}")
    E.e(f"v_lshl_add_u32 {v(vR[1])}, {v(vT1)}, 5, {v(vT0)}")
    for i in range(4):
        E.e(f"v_mov_b32 {v(vOnes+i)}, {hx(ONES)}")
    E.e(f"v_cmp_eq_u32 {s(sMask12,2)}, 12, {v(vN)}")
    E.e(f"v_cmp_le_u32 {s(sMaskGe12,2)}, 12, {v(vN)}")
    E.e(f"v_cmp_eq_u32 {s(sMaskG3,2)}, 3, {v(vG)}")

    def reads(k):
        b = WF[k & 1]
        kk = k if k < 7 else k - 7
        r = []
        for t in (1, 0, 2, 3, 4, 5):
            for hf in range(2):
                off = kk*6144 + (t >> 1)*64 + hf*768
                r.append(f"ds_read_b64_tr_b16 {v(b + t*4 + hf*2, 2)}, {v(vR[t & 1])} offset:{off}")
        return r
    E.wait_vm("st0", " lgkmcnt(0)")
    E.e("s_barrier")
    for r in reads(0): E.e(r)
    for k in range(14):
        b = WF[k & 1]
        nxt = reads(k+1) if k < 13 else []
        if k < 13 and (k+1) % 2 == 0:
            E.wait_vm(f"st{(k+1)//2}", " lgkmcnt(0)")
            E.e("s_barrier")
        else:
            E.e("s_waitcnt lgkmcnt(0)")
        if k == 6:
            E.e(f"v_add_u32 {v(vR[0])}, {7*6144}, {v(vR[0])}")
            E.e(f"v_add_u32 {v(vR[1])}, {7*6144}, {v(vR[1])}")
        for i in range(4):
            E.e(f"v_cndmask_b32 {v(b+4+i)}, {v(b+4+i)}, {v(vOnes)}, {s(sMask12,2)}")
        ms = []
        for rg in range(2):
            c = "0" if k == 0 else v(SQ+rg*4, 4)
            ms.append(f"{MFMA} {v(SQ+rg*4,4)}, {xf(k,rg)}, {xf(k,rg)}, {c}")
        for t in (2, 3, 4, 5, 0, 1):
            for rg in range(2):
                c = "0" if k == 0 else v(acc(rg,t), 4)
                if t < 2:
                    ms.append(f"{MFMA} {v(acc(rg,t),4)}, {v(b+t*4,4)}, {xf(k,rg)}, {c}")
                else:
                    ms.append(f"{MFMA} {v(acc(rg,t),4)}, {xf(k,rg)}, {v(b+t*4,4)}, {c}")
        for i, m in enumerate(ms):
            E.e(m)
            if i < len(nxt): E.e(nxt[i])
        for hh in range(2):
            l = E.newlab("k1cs")
            E.e(f"s_cmp_eq_u32 {s(sW)}, {(k & 1) + 2*hh}")
            E.e(f"s_cbranch_scc0 {l}")
            for i in range(3):
                c = "0" if k < 2 else v(CSA+i*4, 4)
                E.e(f"{MFMA} {v(CSA+i*4,4)}, {v(vOnes,4)}, {v(b+(3*hh+i)*4,4)}, {c}")
            E.lab(l)
    F = Alloc(WF[0], WF[0]+48)
    vA0, vA1 = vT0, vT1
    E.e(f"s_lshr_b32 {s(sT0)}, {s(sW)}, 1")
    E.e(f"s_mul_i32 {s(sT0)}, {s(sT0)}, 192")
    E.e(f"s_add_u32 {s(sT0)}, {s(sT0)}, {LDS_CS}")
    E.e(f"v_lshl_add_u32 {v(vA0)}, {v(vN)}, 2, {s(sT0)}")
    E.e(f"s_lshl_b32 {s(sT1)}, {s(sW)}, 8")
    E.e(f"s_add_u32 {s(sT1)}, {s(sT1)}, {LDS_ST}")
    E.e(f"v_lshl_add_u32 {v(vA1)}, {v(vN)}, 2, {s(sT1)}")
    E.e(f"v_lshl_add_u32 {v(vT2)}, {v(vG)}, 4, {s(sT1)}")
    E.nop(8)
    E.e("s_mov_b64 exec, 0xffff")
    for i in range(3):
        E.e(f"ds_add_f32 {v(vA0)}, {v(CSA+i*4)} offset:{64*i}")
    E.e(f"s_mov_b64 exec, {s(sMaskG3,2)}")
    E.e(f"ds_write2_b32 {v(vA1)}, {v(acc(0,1))}, {v(acc(1,1))} offset0:0 offset1:16")
    E.e("s_mov_b32 exec_lo, 0x00100001")
    E.e("s_mov_b32 exec_hi, 0x10000100")
    for r in range(4):
        E.e(f"ds_write2_b32 {v(vA1)}, {v(SQ+r)}, {v(SQ+4+r)} offset0:32 offset1:48")
        if r < 3: E.e("s_lshl_b64 exec, exec, 1")
    E.e("s_mov_b64 exec, -1")
    E.e("s_waitcnt lgkmcnt(0)")
    E.e("s_barrier")
    SN = F(8, 2); QN = F(8, 2)
    ST_ = F(2, 2); QT = F(2, 2)
    CN = F(4, 2)
    CT = F(8, 2)
    for rg in range(2):
        E.e(f"ds_read_b128 {v(SN+rg*4,4)}, {v(vT2)} offset:{64*rg}")
        E.e(f"ds_read_b128 {v(QN+rg*4,4)}, {v(vT2)} offset:{128+64*rg}")
    E.e(f"v_lshlrev_b32 {v(vA0)}, 2, {v(vN)}")
    E.e(f"v_add_u32 {v(vA0)}, {LDS_CS}, {v(vA0)}")
    E.e(f"ds_read2_b32 {v(CN,2)}, {v(vA0)} offset0:32 offset1:48")
    E.e(f"ds_read2_b32 {v(CN+2,2)}, {v(vA0)} offset0:64 offset1:80")
    E.e(f"ds_read2_b32 {v(ST_,2)}, {v(vA1)} offset0:0 offset1:16")
    E.e(f"ds_read2_b32 {v(QT,2)}, {v(vA1)} offset0:32 offset1:48")
    E.e(f"v_lshlrev_b32 {v(vA0)}, 4, {v(vG)}")
    E.e(f"v_add_u32 {v(vA0)}, {LDS_CS}, {v(vA0)}")
    E.e(f"ds_read_b128 {v(CT,4)}, {v(vA0)}")
    E.e(f"ds_read_b128 {v(CT+4,4)}, {v(vA0)} offset:64")
    sInv, sEps, sL2e, sE6 = 60, 61, 62, 64
    E.e(f"s_mov_b32 {s(sInv)}, {hx(f2u(1.0/448))}")
    E.e(f"s_mov_b32 {s(sEps)}, {hx(f2u(1e-5))}")
    E.e(f"s_mov_b32 {s(sL2e)}, {hx(f2u(LOG2E))}")
    E.e(f"s_mov_b32 {s(sE6)}, {hx(f2u(1e-6))}")
    E.e(f"s_mov_b32 {s(sE6+1)}, {hx(f2u(1e-6))}")
    vEps = vD[0]
    E.e(f"v_mov_b32 {v(vEps)}, {s(sEps)}")
    C2N = F(8, 2); C2T = F(2, 2)
    def stats(sm, sq, c2, n):
        for i in range(n): E.e(f"v_mul_f32 {v(sm+i)}, {s(sInv)}, {v(sm+i)}")
        for i in range(n): E.e(f"v_fma_f32 {v(sq+i)}, {v(sq+i)}, {s(sInv)}, {v(vEps)}")
        for i in range(n): E.e(f"v_fma_f32 {v(sq+i)}, -{v(sm+i)}, {v(sm+i)}, {v(sq+i)}")
        for i in range(n): E.e(f"v_max_f32 {v(sq+i)}, {v(sq+i)}, {v(vEps)}")
        for i in range(n): E.e(f"v_rsq_f32 {v(sq+i)}, {v(sq+i)}")
        E.e("s_nop 0")
        for i in range(n): E.e(f"v_mul_f32 {v(c2+i)}, {s(sL2e)}, {v(sq+i)}")
    E.e("s_waitcnt lgkmcnt(6)")
    stats(SN, QN, C2N, 8)
    E.e("s_waitcnt lgkmcnt(4)")
    TMP = CSA
    def bsel(reg):
        return v(reg & ~1, 2), reg & 1, reg & 1
    for t in (2, 3, 4, 5):
        po, b0, b1 = bsel(CN + t - 2)
        for rg in range(2):
            for p in range(2):
                d = acc(rg, t) + 2*p
                E.e(f"v_pk_fma_f32 {v(d,2)}, {v(SN+rg*4+2*p,2)}, {po}, {v(d,2)} op_sel:[0,{b0},0] op_sel_hi:[1,{b1},1] neg_lo:[1,0,0] neg_hi:[1,0,0]")
    def phi(d, rs, c2, rsel, tmp):
        E.e(f"v_pk_mul_f32 {v(tmp,2)}, {v(d,2)}, {c2[0]} op_sel:[0,{c2[1]}] op_sel_hi:[1,{c2[2]}]")
        E.e(f"v_pk_fma_f32 {v(d,2)}, {v(d,2)}, {rs[0]}, {s(sE6,2)} op_sel:[0,{rs[1]},0] op_sel_hi:[1,{rs[2]},1]")
        E.e(f"v_exp_f32 {v(tmp)}, {v(tmp)} clamp")
        E.e(f"v_exp_f32 {v(tmp+1)}, {v(tmp+1)} clamp")
        E.e(f"v_max_f32 {v(d)}, {s(sE6)}, {v(d)}")
        E.e(f"v_max_f32 {v(d+1)}, {s(sE6)}, {v(d+1)}")
        E.e(f"v_pk_add_f32 {v(d,2)}, {v(d,2)}, {v(tmp,2)}")
    PKF = A(16, 2)
    ti = 0
    for t in (2, 3):
        for rg in range(2):
            for p in range(2):
                d = acc(rg, t) + 2*p
                phi(d, (v(QN+rg*4+2*p,2), 0, 1), (v(C2N+rg*4+2*p,2), 0, 1), None, TMP + 2*(ti % 4)); ti += 1
                E.e(f"v_cvt_pk_bf16_f32 {v(PKF+(t-2)*4+rg*2+p)}, {v(d)}, {v(d+1)}")
    for t in (4, 5):
        for rg in range(2):
            for p in range(2):
                d = acc(rg, t) + 2*p
                E.e(f"v_pk_mul_f32 {v(d,2)}, {v(d,2)}, {v(QN+rg*4+2*p,2)}")
                E.e(f"v_cvt_pk_bf16_f32 {v(PKF+(t-2)*4+rg*2+p)}, {v(d)}, {v(d+1)}")
    for i in range(4):
        E.e(f"v_cndmask_b32 {v(PKF+4+i)}, {v(PKF+4+i)}, 0, {s(sMaskGe12,2)}")
        E.e(f"v_cndmask_b32 {v(PKF+12+i)}, {v(PKF+12+i)}, {v(vOnes)}, {s(sMaskGe12,2)}")
    KV = acc(0, 2)
    E.e(f"v_lshlrev_b32 {v(vA0)}, 4, v0")
    E.e("s_nop 0")
    for et in range(2):
        for dt in range(2):
            E.e(f"{MFMA} {v(KV+(et*2+dt)*4,4)}, {v(PKF+8+et*4,4)}, {v(PKF+dt*4,4)}, 0")
    E.e("s_waitcnt lgkmcnt(0)")
    stats(ST_, QT, C2T, 2)
    for t in range(4):
        E.e(f"ds_write_b128 {v(vA0)}, {v(KV+t*4,4)} offset:{LDS_KVX + t*4096}")
    E.e(f"v_lshlrev_b32 {v(vA1)}, 4, {v(vL)}")
    E.e(f"s_lshl_b32 {s(sT0)}, {s(sW)}, 12")
    E.e(f"v_add_u32 {v(vT2)}, {s(sT0)}, {v(vA1)}")
    E.e("s_waitcnt lgkmcnt(0)")
    E.e("s_barrier")
    KR = acc(1, 2)
    for i in range(4):
        E.e(f"ds_read_b128 {v(KR+i*4,4)}, {v(vT2)} offset:{LDS_KVX + i*1024}")
    E.e(f"s_lshl_b32 {s(sT0)}, {s(sH)}, 16")
    E.e(f"s_lshl_b32 {s(sT1)}, {s(sW)}, 10")
    E.e(f"s_add_u32 {s(sBlk)}, {s(sT0)}, {s(sT1)}")
    E.e(f"s_add_u32 {s(sBlk)}, {s(sBlk)}, {PART_OFF}")
    E.e(f"s_lshl_b32 {s(sT0)}, {s(sRT)}, 12")
    E.e(f"s_add_u32 {s(sT0)}, {s(sT0)}, {s(sBlk)}")
    E.e("s_waitcnt lgkmcnt(0)")
    for p in range(2):
        E.e(f"v_pk_add_f32 {v(KR+2*p,2)}, {v(KR+2*p,2)}, {v(KR+4+2*p,2)}")
        E.e(f"v_pk_add_f32 {v(KR+8+2*p,2)}, {v(KR+8+2*p,2)}, {v(KR+12+2*p,2)}")
    for p in range(2):
        E.e(f"v_pk_add_f32 {v(KR+2*p,2)}, {v(KR+2*p,2)}, {v(KR+8+2*p,2)}")
    E.vm(f"buffer_store_dwordx4 {v(KR,4)}, {v(vA1)}, {s(SWS,4)}, {s(sT0)} offen sc1", "part")
    for rg in range(2):
        mo = bsel(ST_+rg)
        for t in range(2):
            for p in range(2):
                d = acc(rg, t) + 2*p
                E.e(f"v_pk_fma_f32 {v(d,2)}, {mo[0]}, {v(CT+t*4+2*p,2)}, {v(d,2)} op_sel:[{mo[1]},0,0] op_sel_hi:[{mo[2]},1,1] neg_lo:[1,0,0] neg_hi:[1,0,0]")
                phi(d, bsel(QT+rg), bsel(C2T+rg), None, TMP + 2*(ti % 4)); ti += 1
                E.e(f"v_cvt_pk_bf16_f32 {v(PKF+rg*4+t*2+p)}, {v(d)}, {v(d+1)}")
        for p in range(2):
            E.e(f"v_cndmask_b32 {v(PKF+rg*4+2+p)}, {v(PKF+rg*4+2+p)}, 0, {s(sMaskG3,2)}")
    E.e(f"s_lshl_b32 {s(sT0)}, {s(sRT)}, 2")
    E.e(f"s_add_u32 {s(sT0)}, {s(sT0)}, {s(sW)}")
    E.e(f"s_lshl_b32 {s(sT0)}, {s(sT0)}, 15")
    E.e(f"s_lshl_b32 {s(sT1)}, {s(sH)}, 10")
    E.e(f"s_add_u32 {s(sT0)}, {s(sT0)}, {s(sT1)}")
    E.e(f"s_add_u32 {s(sT1)}, {s(sT0)}, 16384")
    assert PQ_OFF == 0
    E.vm(f"buffer_store_dwordx4 {v(PKF,4)}, {v(vA1)}, {s(SWS,4)}, {s(sT0)} offen", "pq")
    E.vm(f"buffer_store_dwordx4 {v(PKF+4,4)}, {v(vA1)}, {s(SWS,4)}, {s(sT1)} offen", "pq")
    E.wait_vm("part")
    E.e("s_barrier")
    lw = E.newlab("k1tk")
    E.e(f"v_mov_b32 {v(vT2)}, {LDS_TK}")
    E.e(f"s_cmp_eq_u32 {s(sW)}, 0")
    E.e(f"s_cbranch_scc0 {lw}")
    E.e(f"s_lshl_b32 {s(sT0)}, {s(sH)}, 4")
    E.e(f"v_mov_b32 {v(vT0)}, 1")
    E.e("s_mov_b64 exec, 1")
    E.e(f"buffer_atomic_add {v(vT0)}, off, {s(SD,4)}, {s(sT0)} sc0")
    E.e("s_waitcnt vmcnt(0)")
    E.e(f"ds_write_b32 {v(vT2)}, {v(vT0)}")
    E.e("s_mov_b64 exec, -1")
    E.e("s_waitcnt lgkmcnt(0)")
    E.lab(lw)
    E.e("s_barrier")
    E.e(f"ds_read_b32 {v(vT0)}, {v(vT2)}")
    E.e("s_waitcnt lgkmcnt(0)")
    E.e(f"v_readfirstlane_b32 {s(sTk)}, {v(vT0)}")
    llast, ljob = ".Lk1_last", ".Lk1_job"
    E.e(f"s_cmp_eq_u32 {s(sTk)}, 15")
    E.e(f"s_cbranch_scc1 {llast}")
    E.e(f"s_cmp_lt_u32 {s(sTk)}, 7")
    E.e(f"s_cbranch_scc1 {ljob}")
    E.lab(end)
    E.e("s_endpgm")
    E.lab(llast)
    E.vm_reset()
    PR = 64
    for i in range(16):
        E.vm(f"buffer_load_dwordx4 {v(PR+4*i,4)}, {v(vA1)}, {s(SWS,4)}, {s(sBlk)} offen sc1", "p")
        if i < 15: E.e(f"s_add_u32 {s(sBlk)}, {s(sBlk)}, 4096")
    E.e(f"s_mul_i32 {s(sT0)}, {s(sH)}, {28*896}")
    E.e(f"s_mul_i32 {s(sT1)}, {s(sW)}, 7168")
    E.e(f"s_add_u32 {s(sT0)}, {s(sT0)}, {s(sT1)}")
    E.e(f"s_add_u32 {s(sT1)}, {s(sT1)}, {LDS_WO}")
    E.e(f"s_mov_b32 m0, {s(sT1)}")
    E.e(f"s_add_u32 {s(sT1)}, {s(sT1)}, 4096")
    for i in range(4):
        E.vm(f"buffer_load_dwordx4 {v(vA1)}, {s(SO,4)}, {s(sT0)} offen offset:{1024*i} lds", "wo")
    E.e(f"s_mov_b32 m0, {s(sT1)}")
    E.e(f"s_add_u32 {s(sT0)}, {s(sT0)}, 4096")
    for i in range(3):
        E.vm(f"buffer_load_dwordx4 {v(vA1)}, {s(SO,4)}, {s(sT0)} offen offset:{1024*i} lds", "wo")
    E.e(f"v_lshrrev_b32 {v(vT0)}, 2, {v(vL)}")
    E.e(f"v_mul_u32_u24 {v(vT0)}, 896, {v(vT0)}")
    E.e(f"v_and_b32 {v(vT2)}, 3, {v(vL)}")
    E.e(f"v_lshl_add_u32 {v(vT0)}, {v(vT2)}, 3, {v(vT0)}")
    E.e(f"s_mul_i32 {s(sT0)}, {s(sW)}, 224")
    E.e(f"v_add_u32 {v(vR[0])}, {s(sT0)}, {v(vT0)}")
    E.e(f"v_lshlrev_b32 {v(vR[1])}, 4, v0")
    E.wait_vm("p")
    st = 8
    while st >= 1:
        for i in range(st):
            for p in range(2):
                E.e(f"v_pk_add_f32 {v(PR+4*i+2*p,2)}, {v(PR+4*i+2*p,2)}, {v(PR+4*(i+st)+2*p,2)}")
        st //= 2
    E.e(f"ds_write_b128 {v(vR[1])}, {v(PR,4)} offset:{LDS_KVS}")
    E.e("s_waitcnt vmcnt(0) lgkmcnt(0)")
    E.e("s_barrier")
    KT = PR + 8
    for t in range(4):
        E.e(f"ds_read_b128 {v(KT+4*t,4)}, {v(vA1)} offset:{LDS_KVS + 1024*t}")
    WO = 128
    for i in range(7):
        for hf in range(2):
            E.e(f"ds_read_b64_tr_b16 {v(WO+4*i+2*hf,2)}, {v(vR[0])} offset:{LDS_WO + 32*i + hf*16*896}")
            if i == 4 and hf == 1:
                E.e("s_waitcnt lgkmcnt(10)")
                AF = PR + 24
                for dt in range(2):
                    for et in range(2):
                        for p in range(2):
                            src = KT + (et*2+dt)*4 + 2*p
                            E.e(f"v_cvt_pk_bf16_f32 {v(AF+dt*4+et*2+p)}, {v(src)}, {v(src+1)}")
                    for p in range(2):
                        E.e(f"v_cndmask_b32 {v(AF+dt*4+2+p)}, {v(AF+dt*4+2+p)}, 0, {s(sMaskG3,2)}")
    ZR = PR + 32
    E.e(f"v_lshlrev_b32 {v(vT0)}, 6, {v(vG)}")
    E.e(f"v_add_u32 {v(vT0)}, {LDS_KVS + 2048 + 48*16}, {v(vT0)}")
    E.e(f"v_add_u32 {v(vT2)}, 1024, {v(vT0)}")
    E.e(f"ds_read2_b32 {v(ZR,2)}, {v(vT0)} offset0:0 offset1:4")
    E.e(f"ds_read2_b32 {v(ZR+2,2)}, {v(vT0)} offset0:8 offset1:12")
    E.e(f"ds_read2_b32 {v(ZR+4,2)}, {v(vT2)} offset0:0 offset1:4")
    E.e(f"ds_read2_b32 {v(ZR+6,2)}, {v(vT2)} offset0:8 offset1:12")
    E.e("s_waitcnt lgkmcnt(4)")
    MD = 160
    for i in range(7):
        for dt in range(2):
            E.e(f"{MFMA} {v(MD+8*i+4*dt,4)}, {v(AF+4*dt,4)}, {v(WO+4*i,4)}, 0")
    E.e(f"s_mul_i32 {s(sT0)}, {s(sH)}, {28*1024}")
    E.e(f"s_mul_i32 {s(sT1)}, {s(sW)}, 7168")
    E.e(f"s_add_u32 {s(sT0)}, {s(sT0)}, {s(sT1)}")
    E.e(f"s_add_u32 {s(sT0)}, {s(sT0)}, {MF_OFF}")
    E.e(f"s_add_u32 {s(sT1)}, {s(sT0)}, 4096")
    E.e("s_waitcnt lgkmcnt(0)")
    for p in range(4):
        E.e(f"v_cvt_pk_bf16_f32 {v(ZR+p)}, {v(ZR+2*p)}, {v(ZR+2*p+1)}")
    E.e(f"v_lshlrev_b32 {v(vT0)}, 4, {v(vG)}")
    E.e(f"s_lshl_b32 {s(sBlk)}, {s(sH)}, 6")
    E.e(f"s_add_u32 {s(sBlk)}, {s(sBlk)}, {ZC_OFF}")
    E.e(f"buffer_store_dwordx4 {v(ZR,4)}, {v(vT0)}, {s(SWS,4)}, {s(sBlk)} offen")
    E.nop(4)
    for i in range(7):
        for p in range(4):
            E.e(f"v_cvt_pk_bf16_f32 {v(WO+4*i+p)}, {v(MD+8*i+2*p)}, {v(MD+8*i+2*p+1)}")
        so = sT0 if i < 4 else sT1
        E.e(f"buffer_store_dwordx4 {v(WO+4*i,4)}, {v(vA1)}, {s(SWS,4)}, {s(so)} offen offset:{1024*(i&3)}")
    E.e("s_endpgm")
    E.lab(ljob)
    E.vm_reset()
    E.e(f"s_mul_i32 {s(sT0)}, {s(sH)}, 7")
    E.e(f"s_add_u32 {s(sTk)}, {s(sTk)}, {s(sT0)}")
    E.e(f"s_cmp_ge_u32 {s(sTk)}, 56")
    E.e(f"s_cselect_b32 {s(SJ)}, {s(SU)}, {s(SG)}")
    E.e(f"s_cselect_b32 {s(SJ+1)}, {s(SU+1)}, {s(SG+1)}")
    E.e(f"s_cselect_b32 {s(sT0)}, 56, 0")
    E.e(f"s_sub_u32 {s(sT0)}, {s(sTk)}, {s(sT0)}")
    E.e(f"s_lshl_b32 {s(sT0)}, {s(sT0)}, 6")
    E.e(f"s_mul_i32 {s(sT1)}, {s(sW)}, {112*3584}")
    E.e(f"s_add_u32 {s(sT0)}, {s(sT0)}, {s(sT1)}")
    E.e(f"v_lshrrev_b32 {v(vT0)}, 3, {v(vL)}")
    E.e(f"v_mul_u32_u24 {v(vT0)}, 3584, {v(vT0)}")
    E.e(f"v_and_b32 {v(vT2)}, 7, {v(vL)}")
    E.e(f"v_lshl_add_u32 {v(vT0)}, {v(vT2)}, 3, {v(vT0)}")
    for i in range(14):
        E.vm(f"buffer_load_dwordx2 {v(PR+2*i,2)}, {v(vT0)}, {s(SJ,4)}, {s(sT0)} offen", f"j{i}")
        if i < 13: E.e(f"s_add_u32 {s(sT0)}, {s(sT0)}, {8*3584}")
    E.e(f"v_lshlrev_b32 {v(vT2)}, 4, {v(vT2)}")
    E.e(f"v_add_u32 {v(vT2)}, {LDS_CS + 384}, {v(vT2)}")
    SA = PR + 32; TT = PR + 40
    E.e(f"s_mov_b32 {s(sT1)}, 0xffff0000")
    for i in range(14):
        E.wait_vm(f"j{i}")
        dst = SA if i == 0 else TT
        E.e(f"v_lshlrev_b32 {v(dst)}, 16, {v(PR+2*i)}")
        E.e(f"v_and_b32 {v(dst+1)}, {s(sT1)}, {v(PR+2*i)}")
        E.e(f"v_lshlrev_b32 {v(dst+2)}, 16, {v(PR+2*i+1)}")
        E.e(f"v_and_b32 {v(dst+3)}, {s(sT1)}, {v(PR+2*i+1)}")
        if i:
            E.e(f"v_pk_add_f32 {v(SA,2)}, {v(SA,2)}, {v(TT,2)}")
            E.e(f"v_pk_add_f32 {v(SA+2,2)}, {v(SA+2,2)}, {v(TT+2,2)}")
    for i in range(4):
        E.e(f"ds_add_f32 {v(vT2)}, {v(SA+i)} offset:{4*i}")
    E.e("s_waitcnt lgkmcnt(0)")
    E.e("s_barrier")
    E.e(f"v_and_b32 {v(vT0)}, 31, v0")
    E.e(f"v_lshlrev_b32 {v(vT0)}, 2, {v(vT0)}")
    E.e(f"v_add_u32 {v(vT2)}, {LDS_CS + 384}, {v(vT0)}")
    E.e(f"ds_read_b32 {v(SA)}, {v(vT2)}")
    E.e(f"s_lshl_b32 {s(sT0)}, {s(sTk)}, 7")
    E.e(f"s_add_u32 {s(sT0)}, {s(sT0)}, {CS_OFF}")
    E.e("s_waitcnt lgkmcnt(0)")
    E.e(f"buffer_store_dword {v(SA)}, {v(vT0)}, {s(SWS,4)}, {s(sT0)} offen")
    E.e("s_endpgm")
    return dict(name=lab, grid=256, lds=88064, vgpr=256, agpr=112)

def gen_k2(E):
    lab = "k2_kernel"
    header(E, lab)
    E.vm_reset()
    SX, SWS = 8, 12
    sW, sRG, sCT, sT0, sT1, sT2, sHi = 16, 17, 18, 19, 20, 21, 22
    end = ".Lk2_end"
    E.e("s_cmp_ge_u32 s2, 256")
    E.e(f"s_cbranch_scc1 {end}")
    E.e(f"s_load_dwordx2 {s(SX,2)}, s[0:1], 0")
    E.e(f"s_load_dwordx2 {s(SWS,2)}, s[0:1], 72")
    A = Alloc(1, 256)
    vL, vG, vN, vT0, vT1, vL16, vG16 = A(), A(), A(), A(), A(), A(), A()
    ZF = A(16, 2); PF = A(32, 2); DEN = A(32, 2); ACC = A(56, 2); XR = A(8, 2); TM = A(8, 2)
    def mf(hh, t): return a((hh*7 + t)*4, 4)
    def pf(hh, rg): return PF + (hh*2 + rg)*4
    def acc(rg, t): return ACC + (rg*7 + t)*4
    E.e(f"v_and_b32 {v(vL)}, 63, v0")
    E.e(f"v_lshrrev_b32 {v(vT0)}, 6, v0")
    E.e(f"v_lshrrev_b32 {v(vG)}, 4, {v(vL)}")
    E.e(f"v_readfirstlane_b32 {s(sW)}, {v(vT0)}")
    E.e(f"v_and_b32 {v(vN)}, 15, {v(vL)}")
    E.e(f"v_lshlrev_b32 {v(vL16)}, 4, {v(vL)}")
    E.e(f"v_lshlrev_b32 {v(vG16)}, 4, {v(vG)}")
    E.e(f"s_and_b32 {s(sT0)}, s2, 7")
    E.e(f"s_lshl_b32 {s(sT0)}, {s(sT0)}, 3")
    E.e(f"s_lshr_b32 {s(sRG)}, s2, 5")
    E.e(f"s_add_u32 {s(sRG)}, {s(sRG)}, {s(sT0)}")
    E.e(f"s_bfe_u32 {s(sCT)}, s2, 0x20003")
    srd(E, SX, X_BYTES); srd(E, SWS, WS_SIZE)
    E.e(f"s_lshl_b32 {s(sT0)}, {s(sW)}, 8")
    E.e(f"s_add_u32 {s(sT0)}, {s(sT0)}, {ZC_OFF}")
    E.e(f"s_lshl_b32 {s(sT1)}, {s(sRG)}, 15")
    E.e(f"s_lshl_b32 {s(sT2)}, {s(sW)}, 12")
    E.e(f"s_add_u32 {s(sT1)}, {s(sT1)}, {s(sT2)}")
    E.e(f"s_add_u32 {s(sT2)}, {s(sT1)}, 16384")
    E.e("s_waitcnt lgkmcnt(0)")
    for hh in range(4):
        E.vm(f"buffer_load_dwordx4 {v(ZF+4*hh,4)}, {v(vG16)}, {s(SWS,4)}, {s(sT0)} offen offset:{64*hh}", f"q{hh}")
        E.vm(f"buffer_load_dwordx4 {v(pf(hh,0),4)}, {v(vL16)}, {s(SWS,4)}, {s(sT1)} offen offset:{1024*hh}", f"q{hh}")
        E.vm(f"buffer_load_dwordx4 {v(pf(hh,1),4)}, {v(vL16)}, {s(SWS,4)}, {s(sT2)} offen offset:{1024*hh}", f"q{hh}")
    E.e(f"s_mul_i32 {s(sT0)}, {s(sW)}, {4*28*1024}")
    E.e(f"s_mul_i32 {s(sT1)}, {s(sCT)}, 7168")
    E.e(f"s_add_u32 {s(sT0)}, {s(sT0)}, {s(sT1)}")
    E.e(f"s_add_u32 {s(sT0)}, {s(sT0)}, {MF_OFF}")
    for hh in range(4):
        E.e(f"s_add_u32 {s(sT1)}, {s(sT0)}, 4096")
        for t in range(7):
            so = sT0 if t < 4 else sT1
            E.vm(f"buffer_load_dwordx4 {mf(hh,t)}, {v(vL16)}, {s(SWS,4)}, {s(so)} offen offset:{1024*(t&3)}", f"m{hh}")
        if hh < 3: E.e(f"s_add_u32 {s(sT0)}, {s(sT0)}, {28*1024}")
    E.e(f"s_lshr_b32 {s(sT1)}, {s(sW)}, 1")
    E.e(f"s_lshl_b32 {s(sT0)}, {s(sRG)}, 1")
    E.e(f"s_add_u32 {s(sRG)}, {s(sT0)}, {s(sT1)}")
    E.e(f"s_mul_i32 {s(sT0)}, {s(sRG)}, {16*896}")
    E.e(f"s_mul_i32 {s(sT1)}, {s(sCT)}, 224")
    E.e(f"s_add_u32 {s(sT0)}, {s(sT0)}, {s(sT1)}")
    E.e(f"s_and_b32 {s(sHi)}, {s(sW)}, 1")
    E.e(f"s_lshl_b32 {s(sT1)}, {s(sHi)}, 7")
    E.e(f"s_add_u32 {s(sT0)}, {s(sT0)}, {s(sT1)}")
    E.e(f"v_mul_u32_u24 {v(vT0)}, 896, {v(vN)}")
    E.e(f"v_lshl_add_u32 {v(vT0)}, {v(vG)}, 3, {v(vT0)}")
    for i in range(4):
        E.vm(f"buffer_load_dwordx2 {v(XR+2*i,2)}, {v(vT0)}, {s(SX,4)}, {s(sT0)} offen offset:{32*i}", "x")
    sE6, sMk = 24, 25
    E.e(f"s_mov_b32 {s(sE6)}, {hx(f2u(1e-6))}")
    E.e(f"s_mov_b32 {s(sMk)}, 0xffff0000")
    for hh in range(4):
        E.wait_vm(f"q{hh}")
        for rg in range(2):
            E.e(f"{MFMA} {v(DEN+(hh*2+rg)*4,4)}, {v(ZF+4*hh,4)}, {v(pf(hh,rg),4)}, 0")
    E.nop(6)
    for i in range(8):
        E.e(f"v_add_f32 {v(DEN+4*i)}, {s(sE6)}, {v(DEN+4*i)}")
    for i in range(8):
        E.e(f"v_rcp_f32 {v(DEN+4*i)}, {v(DEN+4*i)}")
    for hh in range(4):
        for rg in range(2):
            p = pf(hh, rg); d = DEN + (hh*2+rg)*4
            for j in range(4):
                E.e(f"v_lshlrev_b32 {v(TM+2*j)}, 16, {v(p+j)}")
                E.e(f"v_and_b32 {v(TM+2*j+1)}, {s(sMk)}, {v(p+j)}")
            for j in range(4):
                E.e(f"v_pk_mul_f32 {v(TM+2*j,2)}, {v(TM+2*j,2)}, {v(d,2)} op_sel_hi:[1,0]")
            for j in range(4):
                E.e(f"v_cvt_pk_bf16_f32 {v(p+j)}, {v(TM+2*j)}, {v(TM+2*j+1)}")
        E.wait_vm(f"m{hh}")
        E.e("s_nop 0")
        for t in range(7):
            for rg in range(2):
                c = "0" if hh == 0 else v(acc(rg,t), 4)
                E.e(f"{MFMA} {v(acc(rg,t),4)}, {mf(hh,t)}, {v(pf(hh,rg),4)}, {c}")
    E.e(f"v_lshlrev_b32 {v(vT0)}, 4, v0")
    E.e(f"s_lshr_b32 {s(sT0)}, {s(sW)}, 1")
    E.e(f"s_mul_i32 {s(sT0)}, {s(sT0)}, 7")
    E.e(f"s_lshl_b32 {s(sT1)}, {s(sHi)}, 2")
    E.e(f"s_add_u32 {s(sT0)}, {s(sT0)}, {s(sT1)}")
    E.e(f"s_lshl_b32 {s(sT0)}, {s(sT0)}, 12")
    E.e(f"v_add_u32 {v(vT1)}, {s(sT0)}, {v(vL16)}")
    E.nop(2)
    for t in range(7):
        for rg in range(2):
            E.e(f"ds_write_b128 {v(vT0)}, {v(acc(rg,t),4)} offset:{(rg*7+t)*4096}")
    E.e("s_waitcnt lgkmcnt(0)")
    E.e("s_barrier")
    R = PF
    assert DEN == PF + 32
    for i in range(4):
        for wv in range(4):
            E.e(f"ds_read_b128 {v(R+(i*4+wv)*4,4)}, {v(vT1)} offset:{i*4096 + wv*1024}")
    E.e(f"s_mul_i32 {s(sT0)}, {s(sRG)}, 14")
    E.e(f"s_lshr_b32 {s(sT1)}, {s(sCT)}, 1")
    E.e(f"s_mul_i32 {s(sT1)}, {s(sT1)}, 7")
    E.e(f"s_add_u32 {s(sT0)}, {s(sT0)}, {s(sT1)}")
    E.e(f"s_and_b32 {s(sT2)}, {s(sCT)}, 1")
    E.e(f"s_mul_i32 {s(sT1)}, {s(sT2)}, 3")
    E.e(f"s_add_u32 {s(sT1)}, {s(sT1)}, {s(sT0)}")
    E.e(f"s_add_u32 {s(sT1)}, {s(sT1)}, {s(sHi)}")
    E.e(f"s_add_u32 {s(sT1)}, {s(sT1)}, {s(sHi)}")
    E.e(f"s_lshl_b32 {s(sT1)}, {s(sT1)}, 10")
    E.e(f"s_add_u32 {s(sT1)}, {s(sT1)}, {HF_OFF}")
    E.e(f"s_add_u32 {s(sT0)}, {s(sT0)}, 6")
    E.e(f"s_lshl_b32 {s(sT0)}, {s(sT0)}, 10")
    E.e(f"s_lshl_b32 {s(sT2)}, {s(sT2)}, 3")
    E.e(f"s_add_u32 {s(sT0)}, {s(sT0)}, {s(sT2)}")
    E.e(f"s_add_u32 {s(sT0)}, {s(sT0)}, {HF_OFF}")
    HO = ZF
    SM = ZF + 8
    E.wait_vm("x")
    lskip = ".Lk2_three"
    for i in range(4):
        if i == 3:
            E.e(f"s_cmp_eq_u32 {s(sHi)}, 1")
            E.e(f"s_cbranch_scc1 {lskip}")
        E.e(f"s_waitcnt lgkmcnt({12-4*i})")
        b = R + i*16
        for p in range(2):
            E.e(f"v_lshlrev_b32 {v(TM+2*p)}, 16, {v(XR+2*i+p)}")
            E.e(f"v_and_b32 {v(TM+2*p+1)}, {s(sMk)}, {v(XR+2*i+p)}")
        for p in range(2):
            E.e(f"v_pk_add_f32 {v(b+2*p,2)}, {v(b+2*p,2)}, {v(b+4+2*p,2)}")
            E.e(f"v_pk_add_f32 {v(b+8+2*p,2)}, {v(b+8+2*p,2)}, {v(b+12+2*p,2)}")
        for p in range(2):
            E.e(f"v_pk_add_f32 {v(b+2*p,2)}, {v(b+2*p,2)}, {v(b+8+2*p,2)}")
        for p in range(2):
            E.e(f"v_pk_add_f32 {v(b+2*p,2)}, {v(b+2*p,2)}, {v(TM+2*p,2)}")
        for p in range(2):
            E.e(f"v_cvt_pk_bf16_f32 {v(HO+2*i+p)}, {v(b+2*p)}, {v(b+2*p+1)}")
        if i == 1:
            E.e(f"buffer_store_dwordx4 {v(HO,4)}, {v(vL16)}, {s(SWS,4)}, {s(sT1)} offen")
        if i == 3:
            E.e(f"buffer_store_dwordx4 {v(HO+4,4)}, {v(vL16)}, {s(SWS,4)}, {s(sT1)} offen offset:1024")
        for p in range(2):
            E.e(f"v_lshlrev_b32 {v(TM+2*p)}, 16, {v(HO+2*i+p)}")
            E.e(f"v_and_b32 {v(TM+2*p+1)}, {s(sMk)}, {v(HO+2*i+p)}")
        for p in range(2):
            if i == 0 and p == 0:
                E.e(f"v_pk_mul_f32 {v(SM+2,2)}, {v(TM,2)}, {v(TM,2)}")
                E.e(f"v_pk_add_f32 {v(SM,2)}, {v(TM,2)}, {v(TM+2,2)}")
            else:
                E.e(f"v_pk_fma_f32 {v(SM+2,2)}, {v(TM+2*p,2)}, {v(TM+2*p,2)}, {v(SM+2,2)}")
                if i > 0:
                    E.e(f"v_pk_add_f32 {v(SM,2)}, {v(SM,2)}, {v(TM+2*p,2)}")
    lj = ".Lk2_join"
    E.e(f"s_branch {lj}")
    E.lab(lskip)
    E.e(f"buffer_store_dwordx2 {v(HO+4,2)}, {v(vL16)}, {s(SWS,4)}, {s(sT0)} offen")
    E.lab(lj)
    E.e(f"v_add_f32 {v(SM)}, {v(SM)}, {v(SM+1)}")
    E.e(f"v_add_f32 {v(SM+1)}, {v(SM+2)}, {v(SM+3)}")
    E.e(f"v_lshrrev_b32 {v(vT0)}, 5, {v(vL)}")
    E.e(f"v_lshlrev_b32 {v(vT0)}, 2, {v(vT0)}")
    E.e(f"v_permlane32_swap_b32 {v(SM)}, {v(SM+1)}")
    E.e(f"v_lshl_add_u32 {v(vT0)}, {v(vN)}, 6, {v(vT0)}")
    E.e(f"s_lshl_b32 {s(sT0)}, {s(sRG)}, 10")
    E.e(f"v_add_f32 {v(SM)}, {v(SM)}, {v(SM+1)}")
    E.e(f"s_lshl_b32 {s(sT1)}, {s(sCT)}, 4")
    E.e(f"v_mov_b32 {v(SM+1)}, {v(SM)}")
    E.e(f"s_add_u32 {s(sT0)}, {s(sT0)}, {s(sT1)}")
    E.e(f"s_lshl_b32 {s(sT1)}, {s(sHi)}, 3")
    E.e(f"v_permlane16_swap_b32 {v(SM)}, {v(SM+1)}")
    E.e(f"s_add_u32 {s(sT0)}, {s(sT0)}, {s(sT1)}")
    E.e(f"s_add_u32 {s(sT0)}, {s(sT0)}, {ST_OFF}")
    E.e(f"v_add_f32 {v(SM)}, {v(SM)}, {v(SM+1)}")
    E.e(f"buffer_store_dword {v(SM)}, {v(vT0)}, {s(SWS,4)}, {s(sT0)} offen")
    E.lab(end)
    E.e("s_endpgm")
    return dict(name=lab, grid=256, lds=15*4096, vgpr=256, agpr=112)

def krows(k):
    j, i = divmod(k, 7)
    if i < 3: b = 224*j + 32*i; return b, b + 16
    if i < 6: b = 224*j + 112 + 32*(i-3); return b, b + 16
    return 224*j + 96, 224*j + 208

def gen_k3(E):
    lab = "k3_kernel"
    header(E, lab)
    E.vm_reset()
    SG, SU, SWS, SJ = 8, 12, 16, 20
    sW, sRT, sFT, sT0, sT1, sT2, sCol, sM0, sKp, sH0, sH1 = 24, 25, 26, 27, 28, 29, 30, 31, 32, 33, 34
    NST = 5
    UNIT = 7168; STG = 4*UNIT
    end = ".Lk3_end"
    E.e("s_cmp_ge_u32 s2, 256")
    E.e(f"s_cbranch_scc1 {end}")
    E.e(f"s_load_dwordx2 {s(SG,2)}, s[0:1], 32")
    E.e(f"s_load_dwordx2 {s(SU,2)}, s[0:1], 40")
    E.e(f"s_load_dwordx2 {s(SWS,2)}, s[0:1], 72")
    A = Alloc(1, 256)
    vL, vG, vN, vT0, vT1, vT2, vL16 = A(), A(), A(), A(), A(), A(), A()
    vD = [A() for _ in range(7)]; vD6 = [A() for _ in range(4)]
    vR = [A(), A(), A()]
    ST = A(8, 2)
    WF = [A(28, 2), A(28, 2)]
    ACC = A(112, 2)
    def acc(rg, m, t): return ACC + ((rg*2 + m)*7 + t)*4
    def hf(k, rg): return a((k*2 + rg)*4, 4)
    E.e(f"v_and_b32 {v(vL)}, 63, v0")
    E.e(f"v_lshrrev_b32 {v(vT0)}, 6, v0")
    E.e(f"v_lshrrev_b32 {v(vG)}, 4, {v(vL)}")
    E.e(f"v_readfirstlane_b32 {s(sW)}, {v(vT0)}")
    E.e(f"v_and_b32 {v(vN)}, 15, {v(vL)}")
    E.e(f"v_lshlrev_b32 {v(vL16)}, 4, {v(vL)}")
    E.e(f"s_and_b32 {s(sT0)}, s2, 1")
    E.e(f"s_lshl_b32 {s(sT0)}, {s(sT0)}, 3")
    E.e(f"s_lshr_b32 {s(sRT)}, s2, 5")
    E.e(f"s_add_u32 {s(sRT)}, {s(sRT)}, {s(sT0)}")
    E.e(f"s_bfe_u32 {s(sT0)}, s2, 0x20001")
    E.e(f"s_lshl_b32 {s(sT0)}, {s(sT0)}, 2")
    E.e(f"s_bfe_u32 {s(sFT)}, s2, 0x20003")
    E.e(f"s_add_u32 {s(sFT)}, {s(sFT)}, {s(sT0)}")
    for i in range(7):
        E.e(f"v_add_u32 {v(vT0)}, {64*i}, {v(vL)}")
        E.e(f"v_mul_u32_u24 {v(vT1)}, 293, {v(vT0)}")
        E.e(f"v_lshrrev_b32 {v(vT1)}, 12, {v(vT1)}")
        E.e(f"v_mul_u32_u24 {v(vT2)}, {3584-14*16}, {v(vT1)}")
        E.e(f"v_lshl_add_u32 {v(vD[i])}, {v(vT0)}, 4, {v(vT2)}")
        if i & 3:
            E.e(f"v_subrev_u32 {v(vD[i])}, {1024*(i&3)}, {v(vD[i])}")
        if i >= 3:
            E.e(f"v_lshrrev_b32 {v(vT1)}, 4, {v(vT1)}")
            E.e(f"v_mul_u32_u24 {v(vT1)}, {96*3584}, {v(vT1)}")
            E.e(f"v_add_u32 {v(vD6[i-3])}, {v(vD[i])}, {v(vT1)}")
    E.e(f"s_lshr_b32 {s(sKp)}, {s(sW)}, 1")
    E.e(f"s_mul_i32 {s(sCol)}, {s(sFT)}, 224")
    E.e(f"s_mul_i32 {s(sM0)}, {s(sW)}, {UNIT}")
    E.e(f"s_lshl_b32 {s(sT0)}, {s(sRT)}, 2")
    E.e(f"s_add_u32 {s(sT0)}, {s(sT0)}, {s(sW)}")
    E.e(f"s_mul_i32 {s(sH0)}, {s(sT0)}, {28*1024}")
    E.e(f"s_add_u32 {s(sH0)}, {s(sH0)}, {HF_OFF}")
    E.e(f"s_add_u32 {s(sH1)}, {s(sH0)}, {14*1024}")
    E.e(f"s_lshl_b32 {s(sT1)}, {s(sT0)}, 11")
    E.e(f"s_add_u32 {s(sT1)}, {s(sT1)}, {ST_OFF}")
    E.e(f"v_lshlrev_b32 {v(vT0)}, 6, {v(vN)}")
    E.e(f"v_lshl_add_u32 {v(vT0)}, {v(vG)}, 4, {v(vT0)}")
    E.e(f"v_lshlrev_b32 {v(vT1)}, 4, {v(vG)}")
    E.e(f"s_mul_i32 {s(sT2)}, {s(sFT)}, 448")
    E.e(f"s_add_u32 {s(sT2)}, {s(sT2)}, {CS_OFF}")
    srd(E, SWS, WS_SIZE); srd(E, SJ, WG_BYTES)
    E.e(f"s_bitcmp1_b32 {s(sW)}, 0")
    E.e("s_waitcnt lgkmcnt(0)")
    E.e(f"s_cselect_b32 {s(SJ)}, {s(SU)}, {s(SG)}")
    E.e(f"s_cselect_b32 {s(SJ+1)}, {s(SU+1)}, {s(SG+1)}")
    sRow, sA = 36, 37
    def dma(st):
        k0, k1 = 2*st, 2*st + 1
        r0, r1 = krows(k0)[0], krows(k1)[0]
        E.e(f"s_cmp_eq_u32 {s(sKp)}, 0")
        E.e(f"s_mov_b32 {s(sA)}, {r1*3584}")
        E.e(f"s_cselect_b32 {s(sRow)}, {r0*3584}, {s(sA)}")
        E.e(f"s_add_u32 {s(sRow)}, {s(sRow)}, {s(sCol)}")
        E.e(f"s_add_u32 m0, {s(sM0)}, {(st % NST)*STG}")
        sp = [k for k in (k0, k1) if k % 7 == 6]
        def issue(special):
            for i in range(7):
                if i == 4:
                    E.e(f"s_add_u32 m0, {s(sM0)}, {(st % NST)*STG + 4096}")
                    E.e("s_nop 0")
                vo = vD6[i-3] if (special and i >= 3) else vD[i]
                E.e(f"buffer_load_dwordx4 {v(vo)}, {s(SJ,4)}, {s(sRow)} offen offset:{1024*(i&3)} lds")
        if not sp:
            E.e("s_nop 0")
            issue(False)
        else:
            l1, l2 = E.newlab("k3sp"), E.newlab("k3sp")
            E.e(f"s_cmp_eq_u32 {s(sKp)}, {sp[0] & 1}")
            E.e(f"s_cbranch_scc1 {l1}")
            issue(False)
            E.e(f"s_branch {l2}")
            E.lab(l1)
            issue(True)
            E.lab(l2)
        for i in range(7): E.vmq.append(f"w{st}")
    def hload(st):
        for kk in range(2):
            k = 2*st + kk
            for rg, so in ((0, sH0), (1, sH1)):
                if k*1024 < 4096:
                    E.vm(f"buffer_load_dwordx4 {hf(k,rg)}, {v(vL16)}, {s(SWS,4)}, {s(so)} offen offset:{1024*k}", f"h{st}")
                else:
                    E.vm(f"buffer_load_dwordx4 {hf(k,rg)}, {v(vL16)}, {s(SWS,4)}, {s(so)} offen offset:{1024*(k&3)}", f"h{st}")
        if st % 2 == 1 and st < 6:
            E.e(f"s_add_u32 {s(sH0)}, {s(sH0)}, 4096")
            E.e(f"s_add_u32 {s(sH1)}, {s(sH1)}, 4096")
    dma(0); hload(0)
    for rg in range(2):
        E.vm(f"buffer_load_dwordx4 {v(ST+4*rg,4)}, {v(vT0)}, {s(SWS,4)}, {s(sT1)} offen offset:{1024*rg}", "cs")
    E.e(f"s_add_u32 {s(sT1)}, {s(sT2)}, 7168")
    for m in range(2):
        for t in range(7):
            E.vm(f"buffer_load_dwordx4 {v(acc(1,m,t),4)}, {v(vT1)}, {s(SWS,4)}, {s(sT1 if m else sT2)} offen offset:{64*t}", "cs")
    dma(1); hload(1); dma(2); hload(2)
    E.e(f"v_lshrrev_b32 {v(vT0)}, 2, {v(vL)}")
    E.e(f"v_mul_u32_u24 {v(vT0)}, 224, {v(vT0)}")
    E.e(f"v_and_b32 {v(vT1)}, 3, {v(vL)}")
    E.e(f"v_lshl_add_u32 {v(vR[0])}, {v(vT1)}, 3, {v(vT0)}")
    E.e(f"v_add_u32 {v(vR[1])}, {2*STG}, {v(vR[0])}")
    E.e(f"v_add_u32 {v(vR[2])}, {4*STG}, {v(vR[0])}")
    E.wait_vm("cs")
    dma(3); hload(3); dma(4); hload(4)
    E.e(f"v_add_f32 {v(ST)}, {v(ST)}, {v(ST+2)}")
    E.e(f"v_add_f32 {v(ST+1)}, {v(ST+4)}, {v(ST+6)}")
    E.e(f"v_mov_b32 {v(ST+2)}, {v(ST)}")
    E.e(f"v_mov_b32 {v(ST+3)}, {v(ST+1)}")
    E.e("s_nop 1")
    E.e(f"v_permlane32_swap_b32 {v(ST)}, {v(ST+2)}")
    E.e(f"v_permlane32_swap_b32 {v(ST+1)}, {v(ST+3)}")
    E.e("s_nop 1")
    E.e(f"v_pk_add_f32 {v(ST,2)}, {v(ST,2)}, {v(ST+2,2)}")
    E.e(f"v_mov_b32 {v(ST+2)}, {v(ST)}")
    E.e(f"v_mov_b32 {v(ST+3)}, {v(ST+1)}")
    E.e("s_nop 1")
    E.e(f"v_permlane16_swap_b32 {v(ST)}, {v(ST+2)}")
    E.e(f"v_permlane16_swap_b32 {v(ST+1)}, {v(ST+3)}")
    E.e("s_nop 1")
    E.e(f"v_pk_add_f32 {v(ST,2)}, {v(ST,2)}, {v(ST+2,2)}")
    E.e(f"v_mul_f32 {v(ST)}, {hx(f2u(-1.0/448))}, {v(ST)}")
    E.e(f"v_mul_f32 {v(ST+1)}, {hx(f2u(-1.0/448))}, {v(ST+1)}")
    for i in range(28):
        E.e(f"v_pk_mul_f32 {v(ACC+2*i,2)}, {v(ACC+56+2*i,2)}, {v(ST,2)} op_sel_hi:[1,0]")
        E.e(f"v_pk_mul_f32 {v(ACC+56+2*i,2)}, {v(ACC+56+2*i,2)}, {v(ST,2)} op_sel:[0,1] op_sel_hi:[1,1]")
    hload(5); hload(6)
    def reads(u):
        k, m = u >> 1, u & 1
        st = k >> 1
        slot = st % NST
        base = slot*STG + ((k & 1)*2 + m)*UNIT
        rb = slot // 2
        off0 = base - rb*2*STG
        r = []
        for t in range(7):
            for h2 in range(2):
                r.append(f"ds_read_b64_tr_b16 {v(WF[u&1]+t*4+h2*2,2)}, {v(vR[rb])} offset:{off0 + t*32 + h2*3584}")
        return r
    E.wait_vm("h0")
    E.e("s_barrier")
    for r in reads(0): E.e(r)
    for u in range(28):
        k, m = u >> 1, u & 1
        nxt = reads(u+1) if u < 27 else []
        if u < 27 and (u+1) % 4 == 0:
            st = (u+1)//4
            tag = f"h{st}" if st < NST else f"w{st}"
            E.wait_vm(tag, " lgkmcnt(0)")
            E.e("s_barrier")
            if st - 1 + NST < 7:
                dma(st - 1 + NST)
        else:
            E.e("s_waitcnt lgkmcnt(0)")
        i = 0
        for t in range(7):
            for rg in range(2):
                E.e(f"{MFMA} {v(acc(rg,m,t),4)}, {v(WF[u&1]+t*4,4)}, {hf(k,rg)}, {v(acc(rg,m,t),4)}")
                if i < len(nxt): E.e(nxt[i])
                i += 1
    E.e(f"s_lshl_b32 {s(sT0)}, {s(sRT)}, 2")
    E.e(f"s_add_u32 {s(sT0)}, {s(sT0)}, {s(sW)}")
    E.e(f"s_mul_i32 {s(sT0)}, {s(sT0)}, 112")
    E.e(f"s_lshr_b32 {s(sT1)}, {s(sFT)}, 1")
    E.e(f"s_mul_i32 {s(sT1)}, {s(sT1)}, 7")
    E.e(f"s_add_u32 {s(sT0)}, {s(sT0)}, {s(sT1)}")
    E.e(f"s_lshl_b32 {s(sT0)}, {s(sT0)}, 10")
    E.e(f"s_add_u32 {s(sT0)}, {s(sT0)}, {HH_OFF}")
    E.e(f"s_and_b32 {s(sT2)}, {s(sFT)}, 1")
    E.e(f"s_mul_i32 {s(sT1)}, {s(sT2)}, 3072")
    E.e(f"s_add_u32 {s(sT1)}, {s(sT1)}, {s(sT0)}")
    E.e(f"s_lshl_b32 {s(sT2)}, {s(sT2)}, 3")
    E.e(f"s_add_u32 {s(sT0)}, {s(sT0)}, {s(sT2)}")
    E.e(f"s_add_u32 {s(sT0)}, {s(sT0)}, 6144")
    E.e(f"s_add_u32 {s(sH0)}, {s(sT0)}, {56*1024}")
    E.e(f"s_add_u32 {s(sH1)}, {s(sT1)}, {56*1024}")
    O = WF[0]
    for t in range(7):
        for rg in range(2):
            if t == 6 and rg == 0: E.nop(4)
            g, u_ = acc(rg,0,t), acc(rg,1,t)
            o = O + rg*14 + t*2
            for p in range(2):
                E.e(f"v_pk_mul_f32 {v(g+2*p,2)}, {v(g+2*p,2)}, {v(u_+2*p,2)}")
            for p in range(2):
                E.e(f"v_cvt_pk_bf16_f32 {v(o+p)}, {v(g+2*p)}, {v(g+2*p+1)}")
            if t & 1:
                E.e(f"buffer_store_dwordx4 {v(o-2,4)}, {v(vL16)}, {s(SWS,4)}, {s(sH1 if rg else sT1)} offen offset:{1024*(t>>1)}")
            if t == 6:
                E.e(f"buffer_store_dwordx2 {v(o,2)}, {v(vL16)}, {s(SWS,4)}, {s(sH0 if rg else sT0)} offen")
    E.lab(end)
    E.e("s_endpgm")
    return dict(name=lab, grid=256, lds=NST*STG, vgpr=256, agpr=112)

def gen_k4(E):
    lab = "k4_kernel"
    header(E, lab)
    E.vm_reset()
    SWD, SWS, SO = 8, 12, 16
    sW, sRT, sCT, sT0, sT1, sT2, sWb, sM0, sA, sB = 20, 21, 22, 23, 24, 25, 26, 27, 28, 29
    sHH = [30, 31, 32, 33]
    RING = 7
    end = ".Lk4_end"
    E.e("s_cmp_ge_u32 s2, 224")
    E.e(f"s_cbranch_scc1 {end}")
    E.e(f"s_load_dwordx2 {s(SWD,2)}, s[0:1], 48")
    E.e(f"s_load_dwordx2 {s(SO,2)}, s[0:1], 56")
    E.e(f"s_load_dwordx2 {s(SWS,2)}, s[0:1], 72")
    A = Alloc(1, 256)
    vL, vG, vN, vT0, vT1, vT2, vL16 = A(), A(), A(), A(), A(), A(), A()
    vD = [A() for _ in range(4)]
    vR = [A() for _ in range(4)]
    ST = A(4, 2); HR = A(8, 2)
    WF = [A(16, 2), A(16, 2)]
    ACC = A(64, 2)
    RD = A(64, 2)
    def acc(rg, t): return ACC + (rg*4 + t)*4
    def hf(k, rg): return a((k*4 + rg)*4, 4)
    E.e(f"v_and_b32 {v(vL)}, 63, v0")
    E.e(f"v_lshrrev_b32 {v(vT0)}, 6, v0")
    E.e(f"v_lshrrev_b32 {v(vG)}, 4, {v(vL)}")
    E.e(f"v_readfirstlane_b32 {s(sW)}, {v(vT0)}")
    E.e(f"v_and_b32 {v(vN)}, 15, {v(vL)}")
    E.e(f"v_lshlrev_b32 {v(vL16)}, 4, {v(vL)}")
    E.e(f"s_lshr_b32 {s(sT0)}, s2, 3")
    E.e(f"s_mul_i32 {s(sT1)}, {s(sT0)}, 37")
    E.e(f"s_lshr_b32 {s(sT1)}, {s(sT1)}, 8")
    E.e(f"s_mul_i32 {s(sT2)}, {s(sT1)}, 7")
    E.e(f"s_sub_u32 {s(sCT)}, {s(sT0)}, {s(sT2)}")
    E.e(f"s_and_b32 {s(sT0)}, s2, 7")
    E.e(f"s_lshl_b32 {s(sT0)}, {s(sT0)}, 2")
    E.e(f"s_add_u32 {s(sRT)}, {s(sT0)}, {s(sT1)}")
    E.e(f"v_lshrrev_b32 {v(vT0)}, 3, {v(vL)}")
    E.e(f"v_and_b32 {v(vT1)}, 6, {v(vT0)}")
    E.e(f"v_xor_b32 {v(vT1)}, {v(vT1)}, {v(vL)}")
    E.e(f"v_and_b32 {v(vT1)}, 7, {v(vT1)}")
    E.e(f"v_mul_u32_u24 {v(vT0)}, 896, {v(vT0)}")
    E.e(f"v_lshl_add_u32 {v(vD[0])}, {v(vT1)}, 4, {v(vT0)}")
    E.e(f"v_add_u32 {v(vD[1])}, {8*896-1024}, {v(vD[0])}")
    E.e(f"s_mul_i32 {s(sWb)}, {s(sW)}, {448*896}")
    E.e(f"s_lshl_b32 {s(sT0)}, {s(sCT)}, 7")
    E.e(f"s_add_u32 {s(sWb)}, {s(sWb)}, {s(sT0)}")
    E.e(f"s_mul_i32 {s(sM0)}, {s(sW)}, {RING*4096}")
    E.e(f"s_mul_i32 {s(sT0)}, {s(sRT)}, {4*56*1024}")
    E.e(f"s_mul_i32 {s(sT1)}, {s(sW)}, {14*1024}")
    E.e(f"s_add_u32 {s(sT0)}, {s(sT0)}, {s(sT1)}")
    E.e(f"s_add_u32 {s(sHH[0])}, {s(sT0)}, {HH_OFF}")
    for rg in range(1, 4):
        E.e(f"s_add_u32 {s(sHH[rg])}, {s(sHH[rg-1])}, {56*1024}")
    srd(E, SWD, WG_BYTES); srd(E, SWS, WS_SIZE); srd(E, SO, X_BYTES)
    E.e("s_waitcnt lgkmcnt(0)")
    def loads(k):
        r0, r1 = krows(k)
        E.e(f"s_add_u32 m0, {s(sM0)}, {(k % RING)*4096}")
        E.e(f"s_add_u32 {s(sA)}, {s(sWb)}, {r0*896}")
        E.e(f"s_add_u32 {s(sB)}, {s(sWb)}, {r1*896 - 2048}")
        for i in range(4):
            E.vm(f"buffer_load_dwordx4 {v(vD[i&1])}, {s(SWD,4)}, {s(sA if i < 2 else sB)} offen offset:{1024*i} lds", f"k{k}")
        for rg in range(4):
            E.vm(f"buffer_load_dwordx4 {hf(k,rg)}, {v(vL16)}, {s(SWS,4)}, {s(sHH[rg])} offen offset:{1024*(k&3)}", f"k{k}")
        if (k & 3) == 3:
            for rg in range(4):
                E.e(f"s_add_u32 {s(sHH[rg])}, {s(sHH[rg])}, 4096")
    for k in range(RING): loads(k)
    E.e(f"v_lshrrev_b32 {v(vT0)}, 2, {v(vL)}")
    E.e(f"v_bfe_u32 {v(vT1)}, {v(vL)}, 3, 2")
    E.e(f"v_lshlrev_b32 {v(vT0)}, 7, {v(vT0)}")
    E.e(f"v_and_b32 {v(vT2)}, 3, {v(vL)}")
    E.e(f"v_lshl_add_u32 {v(vT0)}, {v(vT2)}, 3, {v(vT0)}")
    E.e(f"v_add_u32 {v(vT0)}, {s(sM0)}, {v(vT0)}")
    for t in range(4):
        E.e(f"v_xor_b32 {v(vT2)}, {t}, {v(vT1)}")
        E.e(f"v_lshl_add_u32 {v(vR[t])}, {v(vT2)}, 5, {v(vT0)}")
    def reads(k):
        r = []
        for t in range(4):
            for h2 in range(2):
                r.append(f"ds_read_b64_tr_b16 {v(WF[k&1]+t*4+h2*2,2)}, {v(vR[t])} offset:{(k % RING)*4096 + h2*2048}")
        return r
    def tail_loads():
        E.e(f"s_lshl_b32 {s(sT0)}, {s(sRT)}, 2")
        E.e(f"s_add_u32 {s(sT0)}, {s(sT0)}, {s(sW)}")
        E.e(f"s_lshl_b32 {s(sT1)}, {s(sT0)}, 10")
        E.e(f"s_add_u32 {s(sT1)}, {s(sT1)}, {ST_OFF}")
        E.e(f"v_lshlrev_b32 {v(vT0)}, 6, {v(vN)}")
        E.e(f"v_lshl_add_u32 {v(vT0)}, {v(vG)}, 4, {v(vT0)}")
        E.vm(f"buffer_load_dwordx4 {v(ST,4)}, {v(vT0)}, {s(SWS,4)}, {s(sT1)} offen", "tl")
        E.e(f"s_mul_i32 {s(sT0)}, {s(sT0)}, {14*1024}")
        E.e(f"s_add_u32 {s(sT0)}, {s(sT0)}, {HF_OFF}")
        c, tt, t3 = 36, 37, 38
        for t in range(4):
            E.e(f"s_lshl_b32 {s(sT1)}, {s(sCT)}, 2")
            E.e(f"s_add_u32 {s(sT1)}, {s(sT1)}, {t}")
            E.e(f"s_mul_i32 {s(c)}, {s(sT1)}, 37")
            E.e(f"s_lshr_b32 {s(c)}, {s(c)}, 8")
            E.e(f"s_mul_i32 {s(tt)}, {s(c)}, 7")
            E.e(f"s_sub_u32 {s(tt)}, {s(sT1)}, {s(tt)}")
            E.e(f"s_and_b32 {s(sT2)}, {s(c)}, 1")
            E.e(f"s_mul_i32 {s(t3)}, {s(sT2)}, 6")
            E.e(f"s_add_u32 {s(t3)}, {s(t3)}, {s(tt)}")
            E.e(f"s_add_u32 {s(sT2)}, {s(sT2)}, 12")
            E.e(f"s_cmp_eq_u32 {s(tt)}, 6")
            E.e(f"s_cselect_b32 {s(t3)}, {s(sT2)}, {s(t3)}")
            E.e(f"s_lshr_b32 {s(c)}, {s(c)}, 1")
            E.e(f"s_mul_i32 {s(c)}, {s(c)}, 7168")
            E.e(f"s_add_u32 {s(c)}, {s(c)}, {s(sT0)}")
            E.e(f"s_lshr_b32 {s(sT1)}, {s(t3)}, 1")
            E.e(f"s_lshl_b32 {s(sT1)}, {s(sT1)}, 10")
            E.e(f"s_add_u32 {s(c)}, {s(c)}, {s(sT1)}")
            E.e(f"s_and_b32 {s(sT1)}, {s(t3)}, 1")
            E.e(f"s_lshl_b32 {s(sT1)}, {s(sT1)}, 3")
            E.e(f"s_add_u32 {s(c)}, {s(c)}, {s(sT1)}")
            E.vm(f"buffer_load_dwordx2 {v(HR+2*t,2)}, {v(vL16)}, {s(SWS,4)}, {s(c)} offen", "tl")
    tail_loads()
    E.wait_vm("k0")
    for r in reads(0): E.e(r)
    for k in range(14):
        nxt = reads(k+1) if k < 13 else []
        if k < 13:
            E.wait_vm(f"k{k+1}", " lgkmcnt(0)")
        else:
            E.e("s_waitcnt lgkmcnt(0)")
        if k + RING < 14: loads(k + RING)
        i = 0
        for t in range(4):
            for rg in range(4):
                c = "0" if k == 0 else v(acc(rg,t), 4)
                E.e(f"{MFMA} {v(acc(rg,t),4)}, {v(WF[k&1]+t*4,4)}, {hf(k,rg)}, {c}")
                if i % 2 == 0 and i//2 < len(nxt): E.e(nxt[i//2])
                i += 1
    E.e(f"v_lshlrev_b32 {v(vT0)}, 4, v0")
    E.e(f"s_lshl_b32 {s(sT0)}, {s(sW)}, 14")
    E.e(f"v_add_u32 {v(vT1)}, {s(sT0)}, {v(vL16)}")
    E.e("s_barrier")
    E.nop(4)
    for t in range(4):
        for rg in range(4):
            E.e(f"ds_write_b128 {v(vT0)}, {v(acc(rg,t),4)} offset:{(rg*4+t)*4096}")
    E.wait_vm("tl")
    E.e(f"v_pk_add_f32 {v(ST,2)}, {v(ST,2)}, {v(ST+2,2)}")
    for sw in ("v_permlane32_swap_b32", "v_permlane16_swap_b32"):
        E.e(f"v_mov_b32 {v(ST+2)}, {v(ST)}")
        E.e(f"v_mov_b32 {v(ST+3)}, {v(ST+1)}")
        E.e("s_nop 1")
        E.e(f"{sw} {v(ST)}, {v(ST+2)}")
        E.e(f"{sw} {v(ST+1)}, {v(ST+3)}")
        E.e("s_nop 1")
        E.e(f"v_pk_add_f32 {v(ST,2)}, {v(ST,2)}, {v(ST+2,2)}")
    E.e(f"v_mov_b32 {v(ST+2)}, {hx(f2u(1e-5))}")
    E.e(f"v_mul_f32 {v(ST)}, {hx(f2u(1.0/448))}, {v(ST)}")
    E.e(f"v_fmamk_f32 {v(ST+1)}, {v(ST+1)}, {hx(f2u(1.0/448))}, {v(ST+2)}")
    E.e(f"v_fma_f32 {v(ST+1)}, -{v(ST)}, {v(ST)}, {v(ST+1)}")
    E.e(f"v_max_f32 {v(ST+1)}, {v(ST+1)}, {v(ST+2)}")
    E.e(f"v_rcp_f32 {v(ST)}, {v(ST+1)}")
    E.e(f"s_lshl_b32 {s(sT0)}, {s(sRT)}, 2")
    E.e(f"s_add_u32 {s(sT0)}, {s(sT0)}, {s(sW)}")
    E.e(f"s_mul_i32 {s(sT0)}, {s(sT0)}, {16*896}")
    E.e(f"s_lshl_b32 {s(sT1)}, {s(sCT)}, 7")
    E.e(f"s_add_u32 {s(sT0)}, {s(sT0)}, {s(sT1)}")
    E.e(f"v_mul_u32_u24 {v(vT2)}, 896, {v(vN)}")
    E.e(f"v_lshl_add_u32 {v(vT2)}, {v(vG)}, 3, {v(vT2)}")
    E.e(f"s_mov_b32 {s(sA)}, 0xffff0000")
    E.e("s_waitcnt lgkmcnt(0)")
    E.e("s_barrier")
    for t in range(4):
        for wv in range(4):
            E.e(f"ds_read_b128 {v(RD+(t*4+wv)*4,4)}, {v(vT1)} offset:{t*4096 + wv*1024}")
    TM = WF[0]
    for t in range(4):
        b = RD + t*16
        for p in range(2):
            E.e(f"v_lshlrev_b32 {v(TM+2*p)}, 16, {v(HR+2*t+p)}")
            E.e(f"v_and_b32 {v(TM+2*p+1)}, {s(sA)}, {v(HR+2*t+p)}")
        E.e(f"s_waitcnt lgkmcnt({12-4*t})")
        for p in range(2):
            E.e(f"v_pk_add_f32 {v(b+2*p,2)}, {v(b+2*p,2)}, {v(b+4+2*p,2)}")
            E.e(f"v_pk_add_f32 {v(b+8+2*p,2)}, {v(b+8+2*p,2)}, {v(b+12+2*p,2)}")
        for p in range(2):
            E.e(f"v_pk_add_f32 {v(b+2*p,2)}, {v(b+2*p,2)}, {v(b+8+2*p,2)}")
        for p in range(2):
            E.e(f"v_pk_fma_f32 {v(b+2*p,2)}, {v(b+2*p,2)}, {v(ST,2)}, {v(TM+2*p,2)} op_sel_hi:[1,0,1]")
        for p in range(2):
            E.e(f"v_cvt_pk_bf16_f32 {v(b+4+p)}, {v(b+2*p)}, {v(b+2*p+1)}")
        E.e(f"buffer_store_dwordx2 {v(b+4,2)}, {v(vT2)}, {s(SO,4)}, {s(sT0)} offen offset:{32*t}")
    E.lab(end)
    E.e("s_endpgm")
    return dict(name=lab, grid=224, lds=4*RING*4096, vgpr=256, agpr=224)

def build(path, which=(1, 2, 3, 4)):
    E = Em()
    gens = {1: gen_k1, 2: gen_k2, 3: gen_k3, 4: gen_k4}
    infos = [gens[i](E) for i in which]
    head = ["; linear-attention block + bilinear GLU block, four launches (generated by gen/gen.py)"]
    for k in infos:
        head.append(f"; @launch kernel={k['name']} grid=({k['grid']},1,1) block=(256,1,1) lds={k['lds']}")
    head.append('.amdgcn_target "amdgcn-amd-amdhsa--gfx950"')
    head.append(".text")
    tail = ['.section .rodata,"a"']
    for k in infos:
        tail += [".p2align 6", f".amdhsa_kernel {k['name']}",
                 f"  .amdhsa_next_free_vgpr {k['vgpr'] + k['agpr']}",
                 "  .amdhsa_next_free_sgpr 102",
                 f"  .amdhsa_accum_offset {k['vgpr']}",
                 "  .amdhsa_group_segment_fixed_size 0",
                 "  .amdhsa_kernarg_size 80",
                 "  .amdhsa_user_sgpr_count 2",
                 "  .amdhsa_user_sgpr_kernarg_segment_ptr 1",
                 "  .amdhsa_system_sgpr_workgroup_id_x 1",
                 ".end_amdhsa_kernel"]
    open(path, "w").write("\n".join(head) + "\n" + E.text() + "\n".join(tail) + "\n")

if __name__ == "__main__":
    out = sys.argv[1] if len(sys.argv) > 1 else f"cdna_kernels/{NAME}.s"
    build(out)
```
